```python
import torch

def _softmax(x, axis=-1):
    return torch.softmax(x, dim=axis)
def _gelu(x):
    return torch.nn.functional.gelu(x, approximate="tanh")
def _silu(x):
    return torch.nn.functional.silu(x)
def _sigmoid(x):
    return torch.sigmoid(x)
def _layernorm(x, axis=-1, eps=1e-5):
    m = x.mean(dim=axis, keepdim=True)
    v = x.var(dim=axis, keepdim=True, unbiased=False)
    return (x - m) / torch.sqrt(v + eps)
def _scatter_add(tgt, idx, src, axis=0):
    return tgt.clone().index_add_(axis, idx, src)
def _segment_sum(src, seg, n):
    out = torch.zeros((n,) + src.shape[1:], dtype=src.dtype)
    return out.index_add_(0, seg, src)
def _pad(x, pw):
    flat = tuple(v for pair in reversed(pw) for v in pair)
    return torch.nn.functional.pad(x, flat)

kernel_name = 'concat_heads__gqa_block_cached__gqa_block_cached__near_ridge'

def setup_inputs():

    _w = (lambda a: (lambda t: t.to(torch.bfloat16) if t.is_floating_point() else t)(torch.as_tensor(a)))
    def _A_setup():
        B, Sq, D = 8, 96, 512
        Hq, Hkv, Sk, Dh = 32, 32, 512, 128
        assert Hq % Hkv == 0, (Hq, Hkv)
        return {
            "x": _w((lambda *s: torch.randn(*s, dtype=torch.bfloat16) * 0.8)(B, Sq, D)),
            "k_cache": _w((lambda *s: torch.randn(*s, dtype=torch.bfloat16) * 0.8)(B, Hkv, Sk, Dh)),
            "v_cache": _w((lambda *s: torch.randn(*s, dtype=torch.bfloat16) * 0.05)(B, Hkv, Sk, Dh)),
            "wq": _w((lambda *s: torch.randn(*s, dtype=torch.bfloat16) * 0.8)(D, Hq * Dh) * (D ** -0.5)),
            "wo": _w((lambda *s: torch.randn(*s, dtype=torch.bfloat16) * 0.05)(Hq * Dh, D) * ((Hq * Dh) ** -0.5)),
        }
    _A_in = _A_setup()

    def _B_setup():
        B, Sq, D = 8, 96, 512
        Hq, Hkv, Sk, Dh = 32, 32, 512, 128
        assert Hq % Hkv == 0, (Hq, Hkv)
        return {
            "x": _w((lambda *s: torch.randn(*s, dtype=torch.bfloat16) * 0.8)(B, Sq, D)),
            "k_cache": _w((lambda *s: torch.randn(*s, dtype=torch.bfloat16) * 0.8)(B, Hkv, Sk, Dh)),
            "v_cache": _w((lambda *s: torch.randn(*s, dtype=torch.bfloat16) * 0.05)(B, Hkv, Sk, Dh)),
            "wq": _w((lambda *s: torch.randn(*s, dtype=torch.bfloat16) * 0.8)(D, Hq * Dh) * (D ** -0.5)),
            "wo": _w((lambda *s: torch.randn(*s, dtype=torch.bfloat16) * 0.05)(Hq * Dh, D) * ((Hq * Dh) ** -0.5)),
        }
    _B_in = _B_setup()

    return {
        "A_x": _A_in["x"],
        "A_k_cache": _A_in["k_cache"],
        "A_v_cache": _A_in["v_cache"],
        "A_wq": _A_in["wq"],
        "A_wo": _A_in["wo"],
        "B_x": _B_in["x"],
        "B_k_cache": _B_in["k_cache"],
        "B_v_cache": _B_in["v_cache"],
        "B_wq": _B_in["wq"],
        "B_wo": _B_in["wo"],
    }

def reference(A_x, A_k_cache, A_v_cache, A_wq, A_wo, B_x, B_k_cache, B_v_cache, B_wq, B_wo):
    def _A_ref(x, k_cache, v_cache, wq, wo):
        B, Sq, D = x.shape
        Hq, Dh = 32, 128
        Hkv = k_cache.shape[1]
        rep = Hq // Hkv
        q = (lambda x, *d: x.permute(*d))((x @ wq).reshape(B, Sq, Hq, Dh), 0, 2, 1, 3)
        k = (lambda x, n, axis: torch.repeat_interleave(x, n, dim=axis))(k_cache, rep, axis=1)
        v = (lambda x, n, axis: torch.repeat_interleave(x, n, dim=axis))(v_cache, rep, axis=1)
        scores = torch.einsum("bhqd,bhkd->bhqk", q, k) * (Dh ** -0.5)
        p = _softmax(scores, axis=-1)
        o = torch.einsum("bhqk,bhkd->bhqd", p, v)
        return (lambda x, *d: x.permute(*d))(o, 0, 2, 1, 3).reshape(B, Sq, Hq * Dh) @ wo

    def _B_ref(x, k_cache, v_cache, wq, wo):
        B, Sq, D = x.shape
        Hq, Dh = 32, 128
        Hkv = k_cache.shape[1]
        rep = Hq // Hkv
        q = (lambda x, *d: x.permute(*d))((x @ wq).reshape(B, Sq, Hq, Dh), 0, 2, 1, 3)
        k = (lambda x, n, axis: torch.repeat_interleave(x, n, dim=axis))(k_cache, rep, axis=1)
        v = (lambda x, n, axis: torch.repeat_interleave(x, n, dim=axis))(v_cache, rep, axis=1)
        scores = torch.einsum("bhqd,bhkd->bhqk", q, k) * (Dh ** -0.5)
        p = _softmax(scores, axis=-1)
        o = torch.einsum("bhqk,bhkd->bhqd", p, v)
        return (lambda x, *d: x.permute(*d))(o, 0, 2, 1, 3).reshape(B, Sq, Hq * Dh) @ wo

    a = _A_ref(A_x, A_k_cache, A_v_cache, A_wq, A_wo)
    b = _B_ref(B_x, B_k_cache, B_v_cache, B_wq, B_wo)
    return torch.concatenate([a, b], axis=-1)
```

```python
import sys
OUT = "concat_heads__gqa_block_cached__gqa_block_cached__near_ridge.s"
L = []
def e(s): L.append("    " + s)
def lab(s): L.append(s + ":")
def vr(a, n): return f"v[{a}:{a+n-1}]"
def sr(a, n): return f"s[{a}:{a+n-1}]"

NSLOT = 4
PART_BASE = 16 * 1024 * 1024
SCALE = (128 ** -0.5) * 1.4426950408889634
import struct
def f2u(f): return struct.unpack('<I', struct.pack('<f', f))[0]

VQB = 32
VACC = 64
VS = 128
VPB = 160
VFR = 176
VKA = 192
VVA = 200
VWA = 204
VXO = 208
VM = 209; VLS = 210; VT = 211; VT2 = 212; VAL = 213; VOO = 214
V_L = 1; Vq = 2; Vhf = 3; Vgrp = 4; Vr4 = 5; Vc = 6; Vt1 = 7; Vt2 = 8; Vt3 = 9

def pipe(ops, D=4):
    n = len(ops)
    for i in range(min(D, n)):
        for r in ops[i][0]: e(r.replace("{b}", str(VFR + 4 * (i % D))).replace("{b2}", str(VFR + 4 * (i % D) + 2)))
    for i in range(n):
        cnt = sum(len(ops[k][0]) for k in range(i + 1, min(i + D, n)))
        e(f"s_waitcnt lgkmcnt({cnt})")
        e(ops[i][1].replace("{a}", vr(VFR + 4 * (i % D), 4)))
        if i + D < n:
            for r in ops[i + D][0]: e(r.replace("{b}", str(VFR + 4 * (i % D))).replace("{b2}", str(VFR + 4 * (i % D) + 2)))

def lane_decode():
    e(f"v_and_b32 v{V_L}, 63, v0")
    e(f"v_and_b32 v{Vq}, 31, v{V_L}")
    e(f"v_lshrrev_b32 v{Vhf}, 5, v{V_L}")
    e(f"v_bfe_u32 v{Vgrp}, v{V_L}, 4, 1")
    e(f"v_bfe_u32 v{Vr4}, v{V_L}, 2, 2")
    e(f"v_and_b32 v{Vc}, 3, v{V_L}")

def tr_addrs(dst, hfrows, swap):
    if swap:
        e(f"v_and_b32 v{Vt1}, 1, v{Vc}")
        e(f"v_lshrrev_b32 v{Vt2}, 1, v{Vc}")
    else:
        e(f"v_lshrrev_b32 v{Vt1}, 1, v{Vc}")
        e(f"v_and_b32 v{Vt2}, 1, v{Vc}")
    e(f"v_lshl_add_u32 v{Vt1}, v{Vgrp}, 1, v{Vt1}")
    e(f"v_mul_u32_u24 v{Vt3}, {hfrows}, v{Vhf}")
    e(f"v_add_u32 v{Vt3}, v{Vt3}, v{Vr4}")
    e(f"v_lshlrev_b32 v{Vt3}, 8, v{Vt3}")
    e(f"v_lshl_add_u32 v{Vt3}, v{Vt2}, 3, v{Vt3}")
    e(f"v_lshlrev_b32 v{Vt2}, 2, v{Vr4}")
    for T in range(4):
        e(f"v_add_u32 v{dst+T}, {4*T}, v{Vt1}")
        e(f"v_xor_b32 v{dst+T}, v{dst+T}, v{Vt2}")
        e(f"v_lshl_add_u32 v{dst+T}, v{dst+T}, 4, v{Vt3}")

def make_srd(d, base, size):
    e(f"s_mov_b32 s{d}, s{base}")
    e(f"s_and_b32 s{d+1}, s{base+1}, 0xffff")
    if isinstance(size, int): e(f"s_mov_b32 s{d+2}, {size}")
    else: e(f"s_mov_b32 s{d+2}, {size}")
    e(f"s_mov_b32 s{d+3}, 0x20000")

def proj_stages(nst, first_stage, xstride_k_bytes=32):
    XB = VS
    for s in range(4):
        e(f"buffer_load_dwordx4 {vr(XB+4*s,4)}, v{VXO}, s[20:23], 0 offen offset:{s*32}")
    for j in range(nst):
        slot = ((first_stage + j) % NSLOT) * 16384
        e("s_barrier")
        if j + 1 < nst:
            nb = XB + 16 * ((j + 1) % 2)
            for s in range(4):
                off = (j + 1) * 128 + s * 32
                if off < 4096:
                    e(f"buffer_load_dwordx4 {vr(nb+4*s,4)}, v{VXO}, s[20:23], 0 offen offset:{off}")
                else:
                    e(f"s_mov_b32 s40, {off & ~4095}")
                    e(f"buffer_load_dwordx4 {vr(nb+4*s,4)}, v{VXO}, s[20:23], s40 offen offset:{off & 4095}")
            e("s_waitcnt vmcnt(4)")
        else:
            e("s_waitcnt vmcnt(0)")
        xb = XB + 16 * (j % 2)
        ops = []
        for s in range(4):
            for T in range(4):
                rd = [f"ds_read_b64_tr_b16 v[{{b}}:{{b}}+1], v{VWA+T} offset:{slot + s*4096}",
                      f"ds_read_b64_tr_b16 v[{{b2}}:{{b2}}+1], v{VWA+T} offset:{slot + s*4096 + 1024}"]
                c = "0" if (j == 0 and s == 0) else vr(VACC + 16 * T, 16)
                ops.append((rd, f"v_mfma_f32_32x32x16_bf16 {vr(VACC+16*T,16)}, {{a}}, {vr(xb+4*s,4)}, {c}"))
        pipe(ops)

def producer_issue(kind, j, slot, wstride):
    for i in range(16):
        e(f"s_mov_b32 m0, {slot*16384 + i*1024}")
        if kind == 'K':
            e(f"s_mov_b32 s40, {j*16384 + i*1024}")
            e(f"buffer_load_dwordx4 v{10 + (i % 4)}, s[24:27], s40 offen lds")
        elif kind == 'V':
            e(f"s_mov_b32 s40, {j*16384 + i*1024}")
            e(f"buffer_load_dwordx4 v14, s[28:31], s40 offen lds")
        else:
            e(f"s_mov_b32 s40, {(64*j + 4*i) * wstride}")
            e(f"buffer_load_dwordx4 v15, s[32:35], s40 offen lds")

def producer(stages, wstride):
    e("v_and_b32 v1, 63, v0")
    e("v_lshrrev_b32 v2, 4, v1")
    e("v_and_b32 v3, 15, v1")
    for i in range(4):
        e(f"v_add_u32 v4, {4*i}, v2")
        e("v_xor_b32 v4, v4, v3")
        e("v_lshlrev_b32 v4, 4, v4")
        e(f"v_lshl_add_u32 v{10+i}, v2, 8, v4")
    e("v_lshlrev_b32 v4, 2, v2")
    e("v_xor_b32 v4, v4, v3")
    e("v_lshlrev_b32 v4, 4, v4")
    e("v_lshl_add_u32 v14, v2, 8, v4")
    e(f"v_mul_u32_u24 v5, {wstride}, v2")
    e("v_add_u32 v15, v5, v4")
    n = len(stages)
    for i in range(min(NSLOT - 1, n)):
        producer_issue(stages[i][0], stages[i][1], i % NSLOT, wstride)
    for i in range(n):
        e(f"s_waitcnt vmcnt({16 * min(NSLOT - 2, n - 1 - i)})")
        e("s_barrier")
        k = i + NSLOT - 1
        if k < n:
            producer_issue(stages[k][0], stages[k][1], k % NSLOT, wstride)
    e("s_endpgm")

def gen_k1():
    lab("attn_kernel")
    e("s_cmp_ge_u32 s2, 512")
    e("s_cbranch_scc1 K1_exit")
    e("s_lshr_b32 s3, s2, 8")
    e("s_bfe_u32 s4, s2, 0x30005")
    e("s_and_b32 s5, s2, 31")
    e("s_mul_i32 s40, s3, 40")
    e("s_add_u32 s42, s0, s40")
    e("s_addc_u32 s43, s1, 0")
    e("s_load_dwordx8 s[8:15], s[42:43], 0")
    e("s_load_dwordx2 s[16:17], s[0:1], 96")
    e("v_lshrrev_b32 v1, 6, v0")
    e("s_nop 0")
    e("v_readfirstlane_b32 s6, v1")
    e("s_waitcnt lgkmcnt(0)")
    e("s_mul_i32 s40, s4, 98304")
    e("s_add_u32 s8, s8, s40"); e("s_addc_u32 s9, s9, 0")
    make_srd(20, 8, 98304)
    e("s_lshl_b32 s40, s4, 5"); e("s_add_u32 s40, s40, s5"); e("s_lshl_b32 s40, s40, 17")
    e("s_add_u32 s10, s10, s40"); e("s_addc_u32 s11, s11, 0")
    e("s_add_u32 s12, s12, s40"); e("s_addc_u32 s13, s13, 0")
    make_srd(24, 10, 131072)
    make_srd(28, 12, 131072)
    e("s_lshl_b32 s40, s5, 8")
    e("s_add_u32 s14, s14, s40"); e("s_addc_u32 s15, s15, 0")
    e("s_sub_u32 s41, 4194304, s40")
    make_srd(32, 14, "s41")
    e("s_lshl_b32 s41, s3, 3"); e("s_add_u32 s41, s41, s4"); e("s_mul_i32 s41, s41, 786432")
    e("s_add_u32 s41, s41, s40")
    e("s_add_u32 s16, s16, s41"); e("s_addc_u32 s17, s17, 0")
    e("s_sub_u32 s41, 786432, s40")
    make_srd(36, 16, "s41")
    e("s_cmp_eq_u32 s6, 3")
    e("s_cbranch_scc1 K1_producer")
    lane_decode()
    tr_addrs(VWA, 8, True)
    tr_addrs(VVA, 4, False)
    e(f"v_and_b32 v{Vt1}, 15, v{Vq}")
    for t in range(8):
        e(f"v_lshl_add_u32 v{VKA+t}, v{Vhf}, 0, {2*t}" if False else f"v_add_u32 v{VKA+t}, {2*t}, v{Vhf}")
        e(f"v_xor_b32 v{VKA+t}, v{VKA+t}, v{Vt1}")
        e(f"v_lshlrev_b32 v{VKA+t}, 4, v{VKA+t}")
        e(f"v_lshl_add_u32 v{VKA+t}, v{Vq}, 8, v{VKA+t}")
    e(f"s_lshl_b32 s40, s6, 5")
    e(f"v_add_u32 v{Vt1}, s40, v{Vq}")
    e(f"v_lshlrev_b32 v{VXO}, 10, v{Vt1}")
    e(f"v_lshl_add_u32 v{VXO}, v{Vhf}, 4, v{VXO}")
    e(f"v_lshlrev_b32 v{VOO}, 13, v{Vt1}")
    e(f"v_lshl_add_u32 v{VOO}, v{Vhf}, 3, v{VOO}")
    proj_stages(8, 0)
    e("s_nop 7"); e("s_nop 4")
    e(f"s_mov_b32 s40, {f2u(SCALE)}")
    for i in range(64):
        e(f"v_mul_f32 v{VACC+i}, s40, v{VACC+i}")
    for i in range(32):
        e(f"v_cvt_pk_bf16_f32 v{VQB+i}, v{VACC+2*i}, v{VACC+2*i+1}")
    for i in range(64):
        e(f"v_mov_b32 v{VACC+i}, 0")
    e(f"v_mov_b32 v{VM}, 0xf149f2ca")
    e(f"v_mov_b32 v{VLS}, 0")
    for j in range(8):
        ks = ((8 + 2 * j) % NSLOT) * 16384
        vs = ((9 + 2 * j) % NSLOT) * 16384
        e("s_barrier")
        ops = []
        for u in range(2):
            for t in range(8):
                rd = [f"ds_read_b128 v[{{b}}:{{b}}+3], v{VKA+t} offset:{ks + u*8192}"]
                c = "0" if t == 0 else vr(VS + 16 * u, 16)
                ops.append((rd, f"v_mfma_f32_32x32x16_bf16 {vr(VS+16*u,16)}, {{a}}, {vr(VQB+4*t,4)}, {c}"))
        pipe(ops)
        e("s_nop 7"); e("s_nop 4")
        e(f"v_max3_f32 v{VT}, v{VS}, v{VS+1}, v{VM}")
        for i in range(1, 16):
            e(f"v_max3_f32 v{VT}, v{VS+2*i}, v{VS+2*i+1}, v{VT}")
        e(f"v_mov_b32 v{VT2}, v{VT}")
        e("s_nop 1")
        e(f"v_permlane32_swap_b32 v{VT}, v{VT2}")
        e("s_nop 1")
        e(f"v_max_f32 v{VT}, v{VT}, v{VT2}")
        e(f"v_sub_f32 v{VAL}, v{VM}, v{VT}")
        e(f"v_exp_f32 v{VAL}, v{VAL}")
        e(f"v_mov_b32 v{VM}, v{VT}")
        for i in range(32):
            e(f"v_sub_f32 v{VS+i}, v{VS+i}, v{VT}")
            e(f"v_exp_f32 v{VS+i}, v{VS+i}")
        e(f"v_mul_f32 v{VLS}, v{VLS}, v{VAL}")
        for i in range(64):
            e(f"v_mul_f32 v{VACC+i}, v{VACC+i}, v{VAL}")
        for i in range(32):
            e(f"v_add_f32 v{VLS}, v{VLS}, v{VS+i}")
        for i in range(16):
            e(f"v_cvt_pk_bf16_f32 v{VPB+i}, v{VS+2*i}, v{VS+2*i+1}")
        e("s_barrier")
        ops = []
        for v in range(4):
            for T in range(4):
                rd = [f"ds_read_b64_tr_b16 v[{{b}}:{{b}}+1], v{VVA+T} offset:{vs + v*4096}",
                      f"ds_read_b64_tr_b16 v[{{b2}}:{{b2}}+1], v{VVA+T} offset:{vs + v*4096 + 2048}"]
                ops.append((rd, f"v_mfma_f32_32x32x16_bf16 {vr(VACC+16*T,16)}, {{a}}, {vr(VPB+4*v,4)}, {vr(VACC+16*T,16)}"))
        pipe(ops)
    e("s_nop 7"); e("s_nop 4")
    e(f"v_mov_b32 v{VT2}, v{VLS}")
    e("s_nop 1")
    e(f"v_permlane32_swap_b32 v{VLS}, v{VT2}")
    e("s_nop 1")
    e(f"v_add_f32 v{VLS}, v{VLS}, v{VT2}")
    e(f"v_rcp_f32 v{VLS}, v{VLS}")
    e("s_nop 0")
    for i in range(64):
        e(f"v_mul_f32 v{VACC+i}, v{VACC+i}, v{VLS}")
    for i in range(32):
        e(f"v_cvt_pk_bf16_f32 v{VS+i}, v{VACC+2*i}, v{VACC+2*i+1}")
    for T in range(4):
        for g in range(4):
            e(f"buffer_store_dwordx2 {vr(VS + 8*T + 2*g, 2)}, v{VOO}, s[36:39], 0 offen offset:{64*T + 16*g}")
    lab("K1_exit")
    e("s_endpgm")
    lab("K1_producer")
    stages = [('W', j) for j in range(8)]
    for j in range(8): stages += [('K', j), ('V', j)]
    producer(stages, 8192)

def gen_k2():
    lab("oproj_kernel")
    e("s_cmp_ge_u32 s2, 256")
    e("s_cbranch_scc1 K2_exit")
    e("s_and_b32 s3, s2, 3")
    e("s_bfe_u32 s4, s2, 0x20002")
    e("s_bfe_u32 s5, s2, 0x30004")
    e("s_lshr_b32 s7, s2, 7")
    e("s_mul_i32 s40, s7, 40")
    e("s_add_u32 s42, s0, s40")
    e("s_addc_u32 s43, s1, 0")
    e("s_load_dwordx2 s[14:15], s[42:43], 32")
    e("s_load_dwordx2 s[16:17], s[0:1], 96")
    e("v_lshrrev_b32 v1, 6, v0")
    e("s_nop 0")
    e("v_readfirstlane_b32 s6, v1")
    e("s_waitcnt lgkmcnt(0)")
    e("s_lshl_b32 s41, s7, 3"); e("s_add_u32 s41, s41, s5"); e("s_mul_i32 s41, s41, 786432")
    e("s_lshl_b32 s40, s3, 11")
    e("s_add_u32 s41, s41, s40")
    e("s_add_u32 s8, s16, s41"); e("s_addc_u32 s9, s17, 0")
    e("s_sub_u32 s41, 786432, s40")
    make_srd(20, 8, "s41")
    e("s_lshl_b32 s40, s3, 20"); e("s_lshl_b32 s41, s4, 8"); e("s_add_u32 s40, s40, s41")
    e("s_add_u32 s14, s14, s40"); e("s_addc_u32 s15, s15, 0")
    e("s_sub_u32 s41, 4194304, s40")
    make_srd(32, 14, "s41")
    e("s_lshl_b32 s41, s3, 1"); e("s_add_u32 s41, s41, s7"); e("s_lshl_b32 s41, s41, 3"); e("s_add_u32 s41, s41, s5")
    e("s_mul_i32 s41, s41, 196608")
    e("s_lshl_b32 s40, s4, 9"); e("s_add_u32 s41, s41, s40")
    e(f"s_add_u32 s41, s41, {PART_BASE}")
    e("s_add_u32 s16, s16, s41"); e("s_addc_u32 s17, s17, 0")
    e("s_sub_u32 s41, 196608, s40")
    make_srd(36, 16, "s41")
    e("s_cmp_eq_u32 s6, 3")
    e("s_cbranch_scc1 K2_producer")
    lane_decode()
    tr_addrs(VWA, 8, False)
    e(f"s_lshl_b32 s40, s6, 5")
    e(f"v_add_u32 v{Vt1}, s40, v{Vq}")
    e(f"v_lshlrev_b32 v{VXO}, 13, v{Vt1}")
    e(f"v_lshl_add_u32 v{VXO}, v{Vhf}, 4, v{VXO}")
    e(f"v_lshlrev_b32 v{VOO}, 11, v{Vt1}")
    e(f"v_lshl_add_u32 v{VOO}, v{Vhf}, 4, v{VOO}")
    proj_stages(16, 0)
    e("s_nop 7"); e("s_nop 4")
    for T in range(4):
        for g in range(4):
            e(f"buffer_store_dwordx4 {vr(VACC + 16*T + 4*g, 4)}, v{VOO}, s[36:39], 0 offen offset:{128*T + 32*g}")
    lab("K2_exit")
    e("s_endpgm")
    lab("K2_producer")
    producer([('W', j) for j in range(16)], 1024)

def gen_k3():
    lab("reduce_kernel")
    e("s_cmp_ge_u32 s2, 768")
    e("s_cbranch_scc1 K3_exit")
    e("s_load_dwordx2 s[16:17], s[0:1], 96")
    e("s_load_dwordx2 s[18:19], s[0:1], 80")
    e("s_waitcnt lgkmcnt(0)")
    e(f"s_add_u32 s16, s16, {PART_BASE}"); e("s_addc_u32 s17, s17, 0")
    make_srd(20, 16, 4 * 3145728)
    make_srd(24, 18, 1572864)
    e("s_lshl_b32 s3, s2, 8")
    e("v_add_u32 v1, s3, v0")
    e("v_lshlrev_b32 v2, 4, v1")
    for sp in range(4):
        e(f"s_mov_b32 s40, {sp*3145728}")
        e(f"buffer_load_dwordx4 {vr(4+4*sp,4)}, v2, s[20:23], s40 offen")
    e("v_lshlrev_b32 v3, 2, v1")
    e("v_and_b32 v20, 511, v3")
    e("v_lshrrev_b32 v21, 9, v3")
    e("v_cmp_le_u32 vcc, 768, v21")
    e("v_cndmask_b32 v22, 0, 1, vcc")
    e("v_mul_u32_u24 v23, 768, v22")
    e("v_sub_u32 v21, v21, v23")
    e("v_lshlrev_b32 v21, 11, v21")
    e("v_lshl_add_u32 v21, v22, 10, v21")
    e("v_lshl_add_u32 v21, v20, 1, v21")
    e("s_waitcnt vmcnt(0)")
    for i in range(4):
        e(f"v_add_f32 v{4+i}, v{4+i}, v{8+i}")
        e(f"v_add_f32 v{12+i}, v{12+i}, v{16+i}")
        e(f"v_add_f32 v{4+i}, v{4+i}, v{12+i}")
    e("v_cvt_pk_bf16_f32 v4, v4, v5")
    e("v_cvt_pk_bf16_f32 v5, v6, v7")
    e("buffer_store_dwordx2 v[4:5], v21, s[24:27], 0 offen")
    lab("K3_exit")
    e("s_endpgm")

hdr = open(OUT + ".ref").read().split("\n")
head = [l for l in hdr if l.startswith(";") and "@launch" not in l]
txt = head + [
 "; @launch kernel=attn_kernel grid=(512,1,1) block=(256,1,1) lds=65536",
 "; @launch kernel=oproj_kernel grid=(256,1,1) block=(256,1,1) lds=65536",
 "; @launch kernel=reduce_kernel grid=(768,1,1) block=(256,1,1) lds=0",
 '.amdgcn_target "amdgcn-amd-amdhsa--gfx950"', ".text"]
for name, g in (("attn_kernel", gen_k1), ("oproj_kernel", gen_k2), ("reduce_kernel", gen_k3)):
    L.clear(); g()
    txt += [f".globl {name}", ".p2align 8", f".type {name},@function"] + L[:]
txt += ['.section .rodata,"a"']
for name, nv in (("attn_kernel", 224), ("oproj_kernel", 224), ("reduce_kernel", 32)):
    txt += [".p2align 6", f".amdhsa_kernel {name}", f"  .amdhsa_next_free_vgpr {nv}", "  .amdhsa_next_free_sgpr 64",
            f"  .amdhsa_accum_offset {nv}", "  .amdhsa_group_segment_fixed_size 0", "  .amdhsa_kernarg_size 104",
            "  .amdhsa_user_sgpr_count 2", "  .amdhsa_user_sgpr_kernarg_segment_ptr 1",
            "  .amdhsa_system_sgpr_workgroup_id_x 1", ".end_amdhsa_kernel"]
open(OUT, "w").write("\n".join(txt) + "\n")
print("written", len(txt), "lines")
```

```python
import sys,os
EXP=os.environ.get("EXP","")
OUT = "concat_heads__gqa_block_cached__gqa_block_cached__near_ridge.s"
L = []
def e(s): L.append("    " + s)
def lab(s): L.append(s + ":")
def vr(a, n): return f"v[{a}:{a+n-1}]"
def sr(a, n): return f"s[{a}:{a+n-1}]"

NSLOT = int(os.environ.get("NSLOT","4"))
PART_BASE = 16 * 1024 * 1024
SCALE = (128 ** -0.5) * 1.4426950408889634
import struct
def f2u(f): return struct.unpack('<I', struct.pack('<f', f))[0]

VQB = 32
VACC = 64
VS = 128
VPB = 160
VFR = 176
VKA = 192
VVA = 200
VWA = 204
VXO = 208
VDM = 216; VM = 209; VLS = 210; VT = 211; VT2 = 212; VAL = 213; VOO = 214
V_L = 1; Vq = 2; Vhf = 3; Vgrp = 4; Vr4 = 5; Vc = 6; Vt1 = 7; Vt2 = 8; Vt3 = 9

def pipe(ops, D=4):
    if EXP=="nocomp": return
    n = len(ops)
    for i in range(min(D, n)):
        for r in ops[i][0]: e(r.replace("{b}", str(VFR + 4 * (i % D))).replace("{b2}", str(VFR + 4 * (i % D) + 2)))
    for i in range(n):
        cnt = sum(len(ops[k][0]) for k in range(i + 1, min(i + D, n)))
        e(f"s_waitcnt lgkmcnt({cnt})")
        e(ops[i][1].replace("{a}", vr(VFR + 4 * (i % D), 4)))
        if i + D < n:
            for r in ops[i + D][0]: e(r.replace("{b}", str(VFR + 4 * (i % D))).replace("{b2}", str(VFR + 4 * (i % D) + 2)))

def lane_decode():
    e(f"v_and_b32 v{V_L}, 63, v0")
    e(f"v_and_b32 v{Vq}, 31, v{V_L}")
    e(f"v_lshrrev_b32 v{Vhf}, 5, v{V_L}")
    e(f"v_bfe_u32 v{Vgrp}, v{V_L}, 4, 1")
    e(f"v_bfe_u32 v{Vr4}, v{V_L}, 2, 2")
    e(f"v_and_b32 v{Vc}, 3, v{V_L}")

def tr_addrs(dst, hfrows, swap):
    if swap:
        e(f"v_and_b32 v{Vt1}, 1, v{Vc}")
        e(f"v_lshrrev_b32 v{Vt2}, 1, v{Vc}")
    else:
        e(f"v_lshrrev_b32 v{Vt1}, 1, v{Vc}")
        e(f"v_and_b32 v{Vt2}, 1, v{Vc}")
    e(f"v_lshl_add_u32 v{Vt1}, v{Vgrp}, 1, v{Vt1}")
    e(f"v_mul_u32_u24 v{Vt3}, {hfrows}, v{Vhf}")
    e(f"v_add_u32 v{Vt3}, v{Vt3}, v{Vr4}")
    e(f"v_lshlrev_b32 v{Vt3}, 8, v{Vt3}")
    e(f"v_lshl_add_u32 v{Vt3}, v{Vt2}, 3, v{Vt3}")
    e(f"v_lshlrev_b32 v{Vt2}, 2, v{Vr4}")
    for T in range(4):
        e(f"v_add_u32 v{dst+T}, {4*T}, v{Vt1}")
        e(f"v_xor_b32 v{dst+T}, v{dst+T}, v{Vt2}")
        e(f"v_lshl_add_u32 v{dst+T}, v{dst+T}, 4, v{Vt3}")

def make_srd(d, base, size):
    e(f"s_mov_b32 s{d}, s{base}")
    e(f"s_and_b32 s{d+1}, s{base+1}, 0xffff")
    if isinstance(size, int): e(f"s_mov_b32 s{d+2}, {size}")
    else: e(f"s_mov_b32 s{d+2}, {size}")
    e(f"s_mov_b32 s{d+3}, 0x20000")

def proj_stages(nst, first_stage, stages, wstride):
    XB = VS
    for s in range(4):
        e(f"buffer_load_dwordx4 {vr(XB+4*s,4)}, v{VXO}, s[20:23], 0 offen offset:{s*32}")
    vm_note(('X', 0), 4)
    for j in range(nst):
        slot = ((first_stage + j) % NSLOT) * 16384
        vm_wait(('D', j))
        e("s_barrier")
        if j + 1 < nst:
            nb = XB + 16 * ((j + 1) % 2)
            for s in range(4):
                off = (j + 1) * 128 + s * 32
                if EXP=="nox": pass
                elif off < 4096:
                    e(f"buffer_load_dwordx4 {vr(nb+4*s,4)}, v{VXO}, s[20:23], 0 offen offset:{off}")
                else:
                    e(f"s_mov_b32 s40, {off & ~4095}")
                    e(f"buffer_load_dwordx4 {vr(nb+4*s,4)}, v{VXO}, s[20:23], s40 offen offset:{off & 4095}")
            vm_note(('X', j + 1), 4)
        dma_share(stages, j + NSLOT - 1, wstride, VDM)
        vm_wait(('X', j))
        xb = XB + 16 * (j % 2)
        ops = []
        for s in range(4):
            for T in range(4):
                rd = [f"ds_read_b64_tr_b16 v[{{b}}:{{b}}+1], v{VWA+T} offset:{slot + s*4096}",
                      f"ds_read_b64_tr_b16 v[{{b2}}:{{b2}}+1], v{VWA+T} offset:{slot + s*4096 + 1024}"]
                c = "0" if (j == 0 and s == 0) else vr(VACC + 16 * T, 16)
                ops.append((rd, f"v_mfma_f32_32x32x16_bf16 {vr(VACC+16*T,16)}, {{a}}, {vr(xb+4*s,4)}, {c}"))
        pipe(ops)

VLOG = []
def vm_note(tag, n=1): VLOG.extend([tag]*n)
def vm_wait(tag):
    idx = max(i for i, t in enumerate(VLOG) if t == tag)
    e(f"s_waitcnt vmcnt({len(VLOG) - 1 - idx})")

def dma_addr_setup(wstride, base):
    e("v_and_b32 v20, 63, v0")
    e("v_lshrrev_b32 v21, 4, v20")
    e("v_and_b32 v22, 15, v20")
    for i in range(4):
        e(f"v_add_u32 v23, {4*i}, v21")
        e("v_xor_b32 v23, v23, v22")
        e("v_lshlrev_b32 v23, 4, v23")
        e(f"v_lshl_add_u32 v{base+i}, v21, 8, v23")
    e("v_lshlrev_b32 v23, 2, v21")
    e("v_xor_b32 v23, v23, v22")
    e("v_lshlrev_b32 v23, 4, v23")
    e(f"v_lshl_add_u32 v{base+4}, v21, 8, v23")
    e(f"v_mul_u32_u24 v24, {wstride}, v21")
    e(f"v_add_u32 v{base+5}, v24, v23")
    e("s_lshl_b32 s44, s6, 12")
    e(f"s_mul_i32 s45, s6, {16*wstride}")

def dma_share(stages, k, wstride, base):
    if k >= len(stages): return
    kind, j = stages[k]; slot = k % NSLOT
    e(f"s_add_u32 m0, s44, {slot*16384}")
    for i in range(4):
        io = i * 1024
        if kind == 'K':
            e(f"s_add_u32 s41, s2, {j}"); e("s_and_b32 s41, s41, 7"); e("s_lshl_b32 s41, s41, 14"); e("s_add_u32 s40, s41, s44")
            e(f"buffer_load_dwordx4 v{base+i}, s[24:27], s40 offen offset:{io} lds")
        elif kind == 'V':
            e(f"s_add_u32 s41, s2, {j}"); e("s_and_b32 s41, s41, 7"); e("s_lshl_b32 s41, s41, 14"); e("s_add_u32 s40, s41, s44")
            e(f"buffer_load_dwordx4 v{base+4}, s[28:31], s40 offen offset:{io} lds")
        else:
            e(f"s_add_u32 s40, s45, {(64*j + 4*i) * wstride - io}")
            e(f"buffer_load_dwordx4 v{base+5}, s[32:35], s40 offen offset:{io} lds")
    vm_note(('D', k), 4)

def producer(stages, wstride):
    VLOG.clear()
    dma_addr_setup(wstride, 10)
    n = len(stages)
    for i in range(min(NSLOT - 1, n)): dma_share(stages, i, wstride, 10)
    for i in range(n):
        vm_wait(('D', i))
        e("s_barrier")
        dma_share(stages, i + NSLOT - 1, wstride, 10)
    e("s_endpgm")

def gen_k1():
    lab("attn_kernel")
    e("s_cmp_ge_u32 s2, 512")
    e("s_cbranch_scc1 K1_exit")
    e("s_lshr_b32 s3, s2, 8")
    e("s_bfe_u32 s4, s2, 0x30005")
    e("s_and_b32 s5, s2, 31")
    e("s_mul_i32 s40, s3, 40")
    e("s_add_u32 s42, s0, s40")
    e("s_addc_u32 s43, s1, 0")
    e("s_load_dwordx8 s[8:15], s[42:43], 0")
    e("s_load_dwordx2 s[16:17], s[0:1], 96")
    e("v_lshrrev_b32 v1, 6, v0")
    e("s_nop 0")
    e("v_readfirstlane_b32 s6, v1")
    e("s_waitcnt lgkmcnt(0)")
    e("s_mul_i32 s40, s4, 98304")
    if EXP=="same1": e("s_mov_b32 s40, 0")
    e("s_add_u32 s8, s8, s40"); e("s_addc_u32 s9, s9, 0")
    make_srd(20, 8, 98304)
    e("s_lshl_b32 s40, s4, 5"); e("s_add_u32 s40, s40, s5"); e("s_lshl_b32 s40, s40, 17")
    e("s_add_u32 s10, s10, s40"); e("s_addc_u32 s11, s11, 0")
    e("s_add_u32 s12, s12, s40"); e("s_addc_u32 s13, s13, 0")
    make_srd(24, 10, 131072)
    make_srd(28, 12, 131072)
    e("s_lshl_b32 s40, s5, 8")
    if EXP=="same1": e("s_mov_b32 s40, 0")
    e("s_add_u32 s14, s14, s40"); e("s_addc_u32 s15, s15, 0")
    e("s_sub_u32 s41, 4194304, s40")
    make_srd(32, 14, "s41")
    e("s_lshl_b32 s41, s3, 3"); e("s_add_u32 s41, s41, s4"); e("s_mul_i32 s41, s41, 786432")
    e("s_add_u32 s41, s41, s40")
    e("s_add_u32 s16, s16, s41"); e("s_addc_u32 s17, s17, 0")
    e("s_sub_u32 s41, 786432, s40")
    make_srd(36, 16, "s41")
    e("s_cmp_eq_u32 s6, 3")
    e("s_cbranch_scc1 K1_producer")
    lane_decode()
    tr_addrs(VWA, 8, True)
    tr_addrs(VVA, 4, False)
    e(f"v_and_b32 v{Vt1}, 15, v{Vq}")
    for t in range(8):
        e(f"v_lshl_add_u32 v{VKA+t}, v{Vhf}, 0, {2*t}" if False else f"v_add_u32 v{VKA+t}, {2*t}, v{Vhf}")
        e(f"v_xor_b32 v{VKA+t}, v{VKA+t}, v{Vt1}")
        e(f"v_lshlrev_b32 v{VKA+t}, 4, v{VKA+t}")
        e(f"v_lshl_add_u32 v{VKA+t}, v{Vq}, 8, v{VKA+t}")
    e(f"s_lshl_b32 s40, s6, 5")
    e(f"v_add_u32 v{Vt1}, s40, v{Vq}")
    e(f"v_lshlrev_b32 v{VXO}, 10, v{Vt1}")
    e(f"v_lshl_add_u32 v{VXO}, v{Vhf}, 4, v{VXO}")
    e(f"v_lshlrev_b32 v{VOO}, 13, v{Vt1}")
    e(f"v_lshl_add_u32 v{VOO}, v{Vhf}, 3, v{VOO}")
    stages = [('W', j) for j in range(8)]
    for j in range(8): stages += [('K', j), ('V', j)]
    VLOG.clear()
    dma_addr_setup(8192, VDM)
    for i in range(NSLOT - 1): dma_share(stages, i, 8192, VDM)
    proj_stages(8, 0, stages, 8192)
    e("s_nop 7"); e("s_nop 4")
    e(f"s_mov_b32 s40, {f2u(SCALE)}")
    for i in range(64):
        e(f"v_mul_f32 v{VACC+i}, s40, v{VACC+i}")
    for i in range(32):
        e(f"v_cvt_pk_bf16_f32 v{VQB+i}, v{VACC+2*i}, v{VACC+2*i+1}")
    for i in range(64):
        e(f"v_mov_b32 v{VACC+i}, 0")
    e(f"v_mov_b32 v{VM}, 0xf149f2ca")
    e(f"v_mov_b32 v{VLS}, 0")
    for j in range(8):
        ks = ((8 + 2 * j) % NSLOT) * 16384
        vs = ((9 + 2 * j) % NSLOT) * 16384
        vm_wait(('D', 8 + 2 * j))
        e("s_barrier")
        dma_share(stages, 8 + 2 * j + NSLOT - 1, 8192, VDM)
        ops = []
        for u in range(2):
            for t in range(8):
                rd = [f"ds_read_b128 v[{{b}}:{{b}}+3], v{VKA+t} offset:{ks + u*8192}"]
                c = "0" if t == 0 else vr(VS + 16 * u, 16)
                ops.append((rd, f"v_mfma_f32_32x32x16_bf16 {vr(VS+16*u,16)}, {{a}}, {vr(VQB+4*t,4)}, {c}"))
        pipe(ops)
        e("s_nop 7"); e("s_nop 4")
        e(f"v_max3_f32 v{VT}, v{VS}, v{VS+1}, v{VM}")
        for i in range(1, 16):
            e(f"v_max3_f32 v{VT}, v{VS+2*i}, v{VS+2*i+1}, v{VT}")
        e(f"v_mov_b32 v{VT2}, v{VT}")
        e("s_nop 1")
        e(f"v_permlane32_swap_b32 v{VT}, v{VT2}")
        e("s_nop 1")
        e(f"v_max_f32 v{VT}, v{VT}, v{VT2}")
        e(f"v_sub_f32 v{VAL}, v{VM}, v{VT}")
        e(f"v_exp_f32 v{VAL}, v{VAL}")
        e(f"v_mov_b32 v{VM}, v{VT}")
        for i in range(32):
            e(f"v_sub_f32 v{VS+i}, v{VS+i}, v{VT}")
            e(f"v_exp_f32 v{VS+i}, v{VS+i}")
        e(f"v_mul_f32 v{VLS}, v{VLS}, v{VAL}")
        for i in range(64):
            e(f"v_mul_f32 v{VACC+i}, v{VACC+i}, v{VAL}")
        for i in range(32):
            e(f"v_add_f32 v{VLS}, v{VLS}, v{VS+i}")
        for i in range(16):
            e(f"v_cvt_pk_bf16_f32 v{VPB+i}, v{VS+2*i}, v{VS+2*i+1}")
        vm_wait(('D', 9 + 2 * j))
        e("s_barrier")
        dma_share(stages, 9 + 2 * j + NSLOT - 1, 8192, VDM)
        ops = []
        for v in range(4):
            for T in range(4):
                rd = [f"ds_read_b64_tr_b16 v[{{b}}:{{b}}+1], v{VVA+T} offset:{vs + v*4096}",
                      f"ds_read_b64_tr_b16 v[{{b2}}:{{b2}}+1], v{VVA+T} offset:{vs + v*4096 + 2048}"]
                ops.append((rd, f"v_mfma_f32_32x32x16_bf16 {vr(VACC+16*T,16)}, {{a}}, {vr(VPB+4*v,4)}, {vr(VACC+16*T,16)}"))
        pipe(ops)
    e("s_nop 7"); e("s_nop 4")
    e(f"v_mov_b32 v{VT2}, v{VLS}")
    e("s_nop 1")
    e(f"v_permlane32_swap_b32 v{VLS}, v{VT2}")
    e("s_nop 1")
    e(f"v_add_f32 v{VLS}, v{VLS}, v{VT2}")
    e(f"v_rcp_f32 v{VLS}, v{VLS}")
    e("s_nop 0")
    for i in range(64):
        e(f"v_mul_f32 v{VACC+i}, v{VACC+i}, v{VLS}")
    for i in range(32):
        e(f"v_cvt_pk_bf16_f32 v{VS+i}, v{VACC+2*i}, v{VACC+2*i+1}")
    for T in range(4):
        for g in range(4):
            e(f"buffer_store_dwordx2 {vr(VS + 8*T + 2*g, 2)}, v{VOO}, s[36:39], 0 offen offset:{64*T + 16*g}")
    lab("K1_exit")
    e("s_endpgm")
    lab("K1_producer")
    producer(stages, 8192)

def gen_k2():
    lab("oproj_kernel")
    e("s_cmp_ge_u32 s2, 256")
    e("s_cbranch_scc1 K2_exit")
    e("s_and_b32 s3, s2, 3")
    e("s_bfe_u32 s4, s2, 0x20002")
    e("s_bfe_u32 s5, s2, 0x30004")
    e("s_lshr_b32 s7, s2, 7")
    if EXP=="same":
        for r in (3,4,5,7): e(f"s_mov_b32 s{r}, 0")
    e("s_mul_i32 s40, s7, 40")
    e("s_add_u32 s42, s0, s40")
    e("s_addc_u32 s43, s1, 0")
    e("s_load_dwordx2 s[14:15], s[42:43], 32")
    e("s_load_dwordx2 s[16:17], s[0:1], 96")
    e("v_lshrrev_b32 v1, 6, v0")
    e("s_nop 0")
    e("v_readfirstlane_b32 s6, v1")
    e("s_waitcnt lgkmcnt(0)")
    e("s_lshl_b32 s41, s7, 3"); e("s_add_u32 s41, s41, s5"); e("s_mul_i32 s41, s41, 786432")
    e("s_lshl_b32 s40, s3, 11")
    e("s_add_u32 s41, s41, s40")
    e("s_add_u32 s8, s16, s41"); e("s_addc_u32 s9, s17, 0")
    e("s_sub_u32 s41, 786432, s40")
    make_srd(20, 8, "s41")
    e("s_lshl_b32 s40, s3, 20"); e("s_lshl_b32 s41, s4, 8"); e("s_add_u32 s40, s40, s41")
    e("s_add_u32 s14, s14, s40"); e("s_addc_u32 s15, s15, 0")
    e("s_sub_u32 s41, 4194304, s40")
    make_srd(32, 14, "s41")
    e("s_lshl_b32 s41, s3, 1"); e("s_add_u32 s41, s41, s7"); e("s_lshl_b32 s41, s41, 3"); e("s_add_u32 s41, s41, s5")
    e("s_mul_i32 s41, s41, 196608")
    e("s_lshl_b32 s40, s4, 9"); e("s_add_u32 s41, s41, s40")
    e(f"s_add_u32 s41, s41, {PART_BASE}")
    e("s_add_u32 s16, s16, s41"); e("s_addc_u32 s17, s17, 0")
    e("s_sub_u32 s41, 196608, s40")
    make_srd(36, 16, "s41")
    e("s_cmp_eq_u32 s6, 3")
    e("s_cbranch_scc1 K2_producer")
    lane_decode()
    tr_addrs(VWA, 8, False)
    e(f"s_lshl_b32 s40, s6, 5")
    e(f"v_add_u32 v{Vt1}, s40, v{Vq}")
    e(f"v_lshlrev_b32 v{VXO}, 13, v{Vt1}")
    e(f"v_lshl_add_u32 v{VXO}, v{Vhf}, 4, v{VXO}")
    e(f"v_lshlrev_b32 v{VOO}, 11, v{Vt1}")
    e(f"v_lshl_add_u32 v{VOO}, v{Vhf}, 4, v{VOO}")
    stages = [('W', j) for j in range(16)]
    VLOG.clear()
    dma_addr_setup(1024, VDM)
    for i in range(NSLOT - 1): dma_share(stages, i, 1024, VDM)
    proj_stages(16, 0, stages, 1024)
    e("s_nop 7"); e("s_nop 4")
    for T in range(4):
        for g in range(4):
            e(f"buffer_store_dwordx4 {vr(VACC + 16*T + 4*g, 4)}, v{VOO}, s[36:39], 0 offen offset:{128*T + 32*g}")
    lab("K2_exit")
    e("s_endpgm")
    lab("K2_producer")
    producer(stages, 1024)

def gen_k3():
    lab("reduce_kernel")
    e("s_cmp_ge_u32 s2, 768")
    e("s_cbranch_scc1 K3_exit")
    e("s_load_dwordx2 s[16:17], s[0:1], 96")
    e("s_load_dwordx2 s[18:19], s[0:1], 80")
    e("s_waitcnt lgkmcnt(0)")
    e(f"s_add_u32 s16, s16, {PART_BASE}"); e("s_addc_u32 s17, s17, 0")
    make_srd(20, 16, 4 * 3145728)
    make_srd(24, 18, 1572864)
    e("s_lshl_b32 s3, s2, 8")
    e("v_add_u32 v1, s3, v0")
    e("v_lshlrev_b32 v2, 4, v1")
    for sp in range(4):
        e(f"s_mov_b32 s40, {sp*3145728}")
        e(f"buffer_load_dwordx4 {vr(4+4*sp,4)}, v2, s[20:23], s40 offen")
    e("v_lshlrev_b32 v3, 2, v1")
    e("v_and_b32 v20, 511, v3")
    e("v_lshrrev_b32 v21, 9, v3")
    e("v_cmp_le_u32 vcc, 768, v21")
    e("v_cndmask_b32 v22, 0, 1, vcc")
    e("v_mul_u32_u24 v23, 768, v22")
    e("v_sub_u32 v21, v21, v23")
    e("v_lshlrev_b32 v21, 11, v21")
    e("v_lshl_add_u32 v21, v22, 10, v21")
    e("v_lshl_add_u32 v21, v20, 1, v21")
    e("s_waitcnt vmcnt(0)")
    for i in range(4):
        e(f"v_add_f32 v{4+i}, v{4+i}, v{8+i}")
        e(f"v_add_f32 v{12+i}, v{12+i}, v{16+i}")
        e(f"v_add_f32 v{4+i}, v{4+i}, v{12+i}")
    e("v_cvt_pk_bf16_f32 v4, v4, v5")
    e("v_cvt_pk_bf16_f32 v5, v6, v7")
    e("buffer_store_dwordx2 v[4:5], v21, s[24:27], 0 offen")
    lab("K3_exit")
    e("s_endpgm")

hdr = open(OUT + ".ref").read().split("\n")
head = [l for l in hdr if l.startswith(";") and "@launch" not in l]
txt = head + [
 "; @launch kernel=attn_kernel grid=(512,1,1) block=(256,1,1) lds=65536",
 "; @launch kernel=oproj_kernel grid=(256,1,1) block=(256,1,1) lds=65536",
 "; @launch kernel=reduce_kernel grid=(768,1,1) block=(256,1,1) lds=0",
 '.amdgcn_target "amdgcn-amd-amdhsa--gfx950"', ".text"]
for name, g in (("attn_kernel", gen_k1), ("oproj_kernel", gen_k2), ("reduce_kernel", gen_k3)):
    L.clear(); g()
    txt += [f".globl {name}", ".p2align 8", f".type {name},@function"] + L[:]
txt += ['.section .rodata,"a"']
for name, nv in (("attn_kernel", 224), ("oproj_kernel", 224), ("reduce_kernel", 32)):
    txt += [".p2align 6", f".amdhsa_kernel {name}", f"  .amdhsa_next_free_vgpr {nv}", "  .amdhsa_next_free_sgpr 64",
            f"  .amdhsa_accum_offset {nv}", "  .amdhsa_group_segment_fixed_size 0", "  .amdhsa_kernarg_size 104",
            "  .amdhsa_user_sgpr_count 2", "  .amdhsa_user_sgpr_kernarg_segment_ptr 1",
            "  .amdhsa_system_sgpr_workgroup_id_x 1", ".end_amdhsa_kernel"]
open(OUT, "w").write("\n".join(txt) + "\n")
print("written", len(txt), "lines")
```
